```python
import torch

def _softmax(x, axis=-1):
    return torch.softmax(x, dim=axis)
def _gelu(x):
    return torch.nn.functional.gelu(x, approximate="tanh")
def _silu(x):
    return torch.nn.functional.silu(x)
def _sigmoid(x):
    return torch.sigmoid(x)
def _layernorm(x, axis=-1, eps=1e-5):
    m = x.mean(dim=axis, keepdim=True)
    v = x.var(dim=axis, keepdim=True, unbiased=False)
    return (x - m) / torch.sqrt(v + eps)
def _scatter_add(tgt, idx, src, axis=0):
    return tgt.clone().index_add_(axis, idx, src)
def _segment_sum(src, seg, n):
    out = torch.zeros((n,) + src.shape[1:], dtype=src.dtype)
    return out.index_add_(0, seg, src)
def _pad(x, pw):
    flat = tuple(v for pair in reversed(pw) for v in pair)
    return torch.nn.functional.pad(x, flat)

kernel_name = 'standalone__gqa_softmax__sampling'

def setup_inputs():

    _w = (lambda a: (lambda t: t.to(torch.bfloat16) if t.is_floating_point() else t)(torch.as_tensor(a)))
    B, Hq, Hkv, Sq, Sk, D = 8, 32, 8, 1, 2048, 128
    return {
        "q": _w((lambda *s: torch.randn(*s, dtype=torch.bfloat16) * 0.8)(B, Hq, Sq, D)),
        "k": _w((lambda *s: torch.randn(*s, dtype=torch.bfloat16) * 0.8)(B, Hkv, Sk, D)),
        "v": _w((lambda *s: torch.randn(*s, dtype=torch.bfloat16) * 0.05)(B, Hkv, Sk, D)),
    }

def reference(q, k, v):
    B, Hq, Sq, D = q.shape
    Hkv = k.shape[1]
    rep = Hq // Hkv
    k = (lambda x, n, axis: torch.repeat_interleave(x, n, dim=axis))(k, rep, axis=1)
    v = (lambda x, n, axis: torch.repeat_interleave(x, n, dim=axis))(v, rep, axis=1)
    scale = D ** -0.5
    scores = torch.einsum("bhqd,bhkd->bhqk", q, k) * scale
    p = _softmax(scores, axis=-1)
    return torch.einsum("bhqk,bhkd->bhqd", p, v)
```

```python
src=open('var5/prev_R64.s').read()
old="""    s_lshl_b32 s32, s54, 11
    s_add_u32 s34, s32, 4096
    s_add_u32 s36, s32, 8192
    s_add_u32 s38, s32, 12288
"""
assert old in src
def mk(name, pre):
    new="    s_lshl_b32 s32, s54, 11          ; byte offset in k / v\n"+pre+"""    s_or_b32 s32, s32, s55
    s_xor_b32 s34, s32, 4096
    s_xor_b32 s36, s32, 8192
    s_xor_b32 s38, s32, 12288
"""
    open(f'var5/{name}.s','w').write(src.replace(old,new))
mk('r_wh', "    s_lshr_b32 s55, s28, 1\n    s_lshl_b32 s55, s55, 12\n")
mk('r_wl', "    s_and_b32 s55, s28, 3\n    s_lshl_b32 s55, s55, 12\n")
mk('r_sp', "    s_lshl_b32 s55, s48, 12\n")
mk('r_xc', "    s_and_b32 s55, s29, 3\n    s_lshl_b32 s55, s55, 12\n")
mk('r_mx', "    s_lshr_b32 s55, s28, 1\n    s_add_u32 s55, s55, s48\n    s_and_b32 s55, s55, 3\n    s_lshl_b32 s55, s55, 12\n")
mk('r_m2', "    s_lshr_b32 s55, s28, 1\n    s_add_u32 s55, s55, s31\n    s_and_b32 s55, s55, 3\n    s_lshl_b32 s55, s55, 12\n")
mk('r_m3', "    s_lshr_b32 s55, s28, 1\n    s_add_u32 s55, s55, s30\n    s_add_u32 s55, s55, s29\n    s_and_b32 s55, s55, 3\n    s_lshl_b32 s55, s55, 12\n")
mk('r_m4', "    s_add_u32 s55, s28, s48\n    s_and_b32 s55, s55, 3\n    s_lshl_b32 s55, s55, 12\n")
import re
def mk8(name, pre):
    new="    s_lshl_b32 s32, s54, 11          ; byte offset in k / v\n"+pre+"    s_or_b32 s32, s32, s55\n"
    for i in range(1,8):
        new+=f"    s_xor_b32 s{32+i}, s32, {2048*i}\n"
    s=src.replace(old,new)
    def fix(m):
        r=int(m.group(2)); off=int(m.group(3))
        if off>=2048: r+=1; off-=2048
        return f"{m.group(1)}s{r} offen offset:{off} nt"
    s2,n=re.subn(r"(buffer_load_dwordx4 v\[\d+:\d+\], v[12], s\[(?:8:11|12:15)\], )s(\d+) offen offset:(\d+) nt", fix, s)
    assert n==32
    open(f'var5/{name}.s','w').write(s2)
mk8('r_8w', "    s_lshl_b32 s55, s28, 11\n")
mk8('r_8m', "    s_lshl_b32 s55, s48, 1\n    s_add_u32 s55, s55, s28\n    s_and_b32 s55, s55, 7\n    s_lshl_b32 s55, s55, 11\n")
mk8('r_h8', "    s_mul_i32 s55, s54, 0x4f1bb\n    s_bfe_u32 s55, s55, 0x30015\n    s_lshl_b32 s55, s55, 11\n")
mk('r_h4', "    s_mul_i32 s55, s54, 0x4f1bb\n    s_bfe_u32 s55, s55, 0x20016\n    s_lshl_b32 s55, s55, 12\n")
mk8('r_8g', "    s_add_u32 s55, s28, s31\n    s_and_b32 s55, s55, 7\n    s_lshl_b32 s55, s55, 11\n")
mk('r_g', "    s_and_b32 s55, s31, 3\n    s_lshl_b32 s55, s55, 12\n")
def mkx(p,q,g=8):
    if q is None:
        pre=f"    s_bfe_u32 s55, s54, {hex((3<<16)|p)}\n    s_lshl_b32 s55, s55, 11\n"
    else:
        pre=f"    s_lshr_b32 s55, s54, {q-p}\n    s_xor_b32 s55, s55, s54\n    s_bfe_u32 s55, s55, {hex((3<<16)|p)}\n    s_lshl_b32 s55, s55, 11\n"
    n=f"x_{p+11}_{'n' if q is None else q+11}"
    mk8(n,pre); return n
import sys,subprocess
names=[]
for p,q in [(4,None),(5,None),(6,None),(7,None),(8,None),(3,6),(3,7),(3,8),(3,9),(4,7),(4,8),(4,9),(5,8),(6,9)]:
    names.append(mkx(p,q))
print(' '.join(names))
mk8('y1', "    s_and_b32 s55, s28, 4\n    s_or_b32 s55, s55, s48\n    s_lshl_b32 s55, s55, 11\n")
mk8('y3', "    s_lshr_b32 s55, s28, 2\n    s_lshl_b32 s55, s55, 1\n    s_and_b32 s33, s48, 1\n    s_or_b32 s55, s55, s33\n    s_and_b32 s33, s48, 2\n    s_lshl_b32 s33, s33, 1\n    s_or_b32 s55, s55, s33\n    s_lshl_b32 s55, s55, 11\n")
mk('y4', "    s_and_b32 s55, s28, 4\n    s_lshl_b32 s55, s55, 11\n")
mk('y5', "    s_lshr_b32 s55, s48, 1\n    s_xor_b32 s55, s55, s48\n    s_and_b32 s55, s55, 1\n    s_lshl_b32 s55, s55, 1\n    s_and_b32 s33, s28, 4\n    s_or_b32 s55, s55, s33\n    s_lshl_b32 s55, s55, 11\n")
mk('y6', "    s_bfe_u32 s55, s54, 0x10006\n    s_lshl_b32 s55, s55, 1\n    s_and_b32 s33, s28, 4\n    s_or_b32 s55, s55, s33\n    s_lshl_b32 s55, s55, 11\n")
mk8('y7', "    s_xor_b32 s55, s28, s48\n    s_lshl_b32 s55, s55, 11\n")
def mkz(name, nb, rot):
    new = "    s_lshr_b32 s55, s28, 2\n    s_lshl1_add_u32 s40, s48, s55      ; t\n"
    new += "    s_and_b32 s55, s28, 3\n    s_lshl_b32 s55, s55, 3\n    s_lshl_b32 s54, s31, 8\n    s_or_b32 s54, s54, s55\n"
    if nb==2:
        new += "    s_and_b32 s55, s40, 4\n    s_lshl_b32 s55, s55, 5\n    s_or_b32 s54, s54, s55\n"
    if rot:
        new += "    s_or_b32 s54, s54, s40\n"
    new += "    s_lshl_b32 s32, s54, 11\n"
    for i in range(1,8):
        new+=f"    s_xor_b32 s{32+i}, s32, {2048*i}\n"
    m = 7 if nb==3 else 3
    new += f"    s_and_b32 s40, s40, {m}\n    s_lshl_b32 s40, s40, 8\n"
    o2="""    s_lshl_b32 s54, s28, 3
    s_add_u32 s54, s54, s53
    s_lshl_b32 s55, s31, 8
    s_add_u32 s54, s54, s55
"""+old
    assert o2 in src
    s=src.replace(o2,new)
    anchor="    v_lshl_add_u32 v1, v17, 10, v3\n"
    assert anchor in s
    va = f"    v_and_b32 v42, {hex(m<<8)}, v1\n    v_and_b32 v40, 0x300, v2\n    v_lshl_or_b32 v42, v42, 8, v1\n    v_lshl_or_b32 v40, v40, 8, v2\n    v_xor_b32 v42, s40, v42\n    v_xor_b32 v40, s40, v40\n"
    va += f"    v_xor_b32 v41, {hex(0x40400 if nb==3 else 0x400)}, v40\n"
    s=s.replace(anchor,anchor+va)
    def fix(mm):
        isk = mm.group(2)=='1'
        r=int(mm.group(4)); off=int(mm.group(5))
        if off>=2048: r+=1; off-=2048
        if isk: v='v42'
        else:
            v='v41' if off==1024 else 'v40'; off=0
        return f"{mm.group(1)}{v}, {mm.group(3)}, s{r} offen offset:{off} nt"
    s2,n=re.subn(r"(buffer_load_dwordx4 v\[\d+:\d+\], )v([12]), (s\[(?:8:11|12:15)\]), s(\d+) offen offset:(\d+) nt", fix, s)
    assert n==32
    open(f'var5/{name}.s','w').write(s2)
mkz('z1',3,0); mkz('z1r',3,1); mkz('z2',2,0); mkz('z2r',2,1)
def mkw(name, mode):
    new="    s_lshl_b32 s32, s54, 11\n"
    if mode=='t': new+="    s_add_u32 s33, s32, 8192\n"
    if mode=='g': new+="    s_and_b32 s55, s28, 4\n    s_lshl_b32 s55, s55, 11\n    s_or_b32 s32, s32, s55\n    s_xor_b32 s33, s32, 8192\n"
    s=src.replace(old,new)
    anchor="    v_lshl_add_u32 v1, v17, 10, v3\n"
    if mode=='t':
        va="    v_and_b32 v42, 0x700, v1\n    v_and_b32 v40, 0x300, v2\n    v_mul_u32_u24 v42, 7, v42\n    v_mul_u32_u24 v40, 7, v40\n    v_add_u32 v42, v42, v1\n    v_add_u32 v40, v40, v2\n"
    else:
        k = 15 if mode=='h' else 7
        va=f"    v_and_b32 v42, 0x300, v1\n    v_and_b32 v40, 0x300, v2\n    v_mul_u32_u24 v42, {k}, v42\n    v_mul_u32_u24 v40, {k}, v40\n    v_add_u32 v42, v42, v1\n    v_add_u32 v40, v40, v2\n"
    s=s.replace(anchor,anchor+va)
    def fix(mm):
        isk = mm.group(2)=='1'
        r=int(mm.group(4)); off=int(mm.group(5))
        j=(r-32) + (1 if off>=2048 else 0); off%=2048
        if mode=='t':
            if isk: v,so,o='v42',32,j*256+off
            else: v,so,o='v40',(33 if off else 32),j*256
        elif mode=='h':
            v='v42' if isk else 'v40'; so=32; o=(j&3)*256+(j>>2)*2048+off
        else:
            v='v42' if isk else 'v40'; so=32+(j>>2); o=(j&3)*256+off
        assert o<4096
        return f"{mm.group(1)}{v}, {mm.group(3)}, s{so} offen offset:{o} nt"
    s2,n=re.subn(r"(buffer_load_dwordx4 v\[\d+:\d+\], )v([12]), (s\[(?:8:11|12:15)\]), s(\d+) offen offset:(\d+) nt", fix, s)
    assert n==32
    open(f'var5/{name}.s','w').write(s2)
mkw('w_t','t'); mkw('w_h','h'); mkw('w_g','g')
new="""    s_bfe_u32 s55, s54, 0x30005       ; wave half and split pick the first 2 KB piece
    s_or_b32 s54, s54, s55
    s_lshl_b32 s32, s54, 11          ; byte offset in k / v
"""+"".join(f"    s_xor_b32 s{32+i}, s32, {2048*i}\n" for i in range(1,8))
s=open('var5/x_16_n.s').read()
i0=s.index("    s_lshl_b32 s32, s54, 11"); i1=s.index("    s_lshl_b32 s44, s31, 10")
open('var5/x16t.s','w').write(s[:i0]+new+s[i1:])
print(' '.join(mkx(p,q) for p,q in [(5,9),(5,10),(5,11),(6,10),(6,11),(3,5),(4,6),(4,5),(5,6),(5,7)]))
def mkt(ps):
    ps=[p-11 for p in ps]; p0=ps[0]
    pre=f"    s_lshr_b32 s55, s54, {ps[1]-p0}\n    s_xor_b32 s55, s55, s54\n"
    for p in ps[2:]:
        pre+=f"    s_lshr_b32 s33, s54, {p-p0}\n    s_xor_b32 s55, s55, s33\n"
    pre+=f"    s_bfe_u32 s55, s55, {hex((3<<16)|p0)}\n    s_or_b32 s54, s54, s55\n"
    new=pre+"    s_lshl_b32 s32, s54, 11          ; byte offset in k / v\n"+"".join(f"    s_xor_b32 s{32+i}, s32, {2048*i}\n" for i in range(1,8))
    s=open('var5/x_16_n.s').read()
    i0=s.index("    s_lshl_b32 s32, s54, 11"); i1=s.index("    s_lshl_b32 s44, s31, 10")
    n='t_'+'_'.join(str(p+11) for p in ps)
    open(f'var5/{n}.s','w').write(s[:i0]+new+s[i1:]); return n
print(' '.join(mkt(x) for x in [(16,17),(16,20),(16,17,20),(14,16,17),(14,16,20),(16,17,22),(15,16,20),(15,17,20),(16,17,18),(14,17,20)]))
```

```python
src=open('cdna_kernels/standalone__gqa_softmax__sampling.s').read()
old="""    s_lshl_b32 s32, s54, 11
    s_add_u32 s34, s32, 4096
    s_add_u32 s36, s32, 8192
    s_add_u32 s38, s32, 12288
"""
assert old in src
def mk(name, pre):
    new="    s_lshl_b32 s32, s54, 11          ; byte offset in k / v\n"+pre+"""    s_or_b32 s32, s32, s55
    s_xor_b32 s34, s32, 4096
    s_xor_b32 s36, s32, 8192
    s_xor_b32 s38, s32, 12288
"""
    open(f'var5/{name}.s','w').write(src.replace(old,new))
mk('r_wh', "    s_lshr_b32 s55, s28, 1\n    s_lshl_b32 s55, s55, 12\n")
mk('r_wl', "    s_and_b32 s55, s28, 3\n    s_lshl_b32 s55, s55, 12\n")
mk('r_sp', "    s_lshl_b32 s55, s48, 12\n")
mk('r_xc', "    s_and_b32 s55, s29, 3\n    s_lshl_b32 s55, s55, 12\n")
mk('r_mx', "    s_lshr_b32 s55, s28, 1\n    s_add_u32 s55, s55, s48\n    s_and_b32 s55, s55, 3\n    s_lshl_b32 s55, s55, 12\n")
mk('r_m2', "    s_lshr_b32 s55, s28, 1\n    s_add_u32 s55, s55, s31\n    s_and_b32 s55, s55, 3\n    s_lshl_b32 s55, s55, 12\n")
mk('r_m3', "    s_lshr_b32 s55, s28, 1\n    s_add_u32 s55, s55, s30\n    s_add_u32 s55, s55, s29\n    s_and_b32 s55, s55, 3\n    s_lshl_b32 s55, s55, 12\n")
mk('r_m4', "    s_add_u32 s55, s28, s48\n    s_and_b32 s55, s55, 3\n    s_lshl_b32 s55, s55, 12\n")
import re
def mk8(name, pre):
    new="    s_lshl_b32 s32, s54, 11          ; byte offset in k / v\n"+pre+"    s_or_b32 s32, s32, s55\n"
    for i in range(1,8):
        new+=f"    s_xor_b32 s{32+i}, s32, {2048*i}\n"
    s=src.replace(old,new)
    def fix(m):
        r=int(m.group(2)); off=int(m.group(3))
        if off>=2048: r+=1; off-=2048
        return f"{m.group(1)}s{r} offen offset:{off} nt"
    s2,n=re.subn(r"(buffer_load_dwordx4 v\[\d+:\d+\], v[12], s\[(?:8:11|12:15)\], )s(\d+) offen offset:(\d+) nt", fix, s)
    assert n==32
    open(f'var5/{name}.s','w').write(s2)
mk8('r_8w', "    s_lshl_b32 s55, s28, 11\n")
mk8('r_8m', "    s_lshl_b32 s55, s48, 1\n    s_add_u32 s55, s55, s28\n    s_and_b32 s55, s55, 7\n    s_lshl_b32 s55, s55, 11\n")
mk8('r_h8', "    s_mul_i32 s55, s54, 0x4f1bb\n    s_bfe_u32 s55, s55, 0x30015\n    s_lshl_b32 s55, s55, 11\n")
mk('r_h4', "    s_mul_i32 s55, s54, 0x4f1bb\n    s_bfe_u32 s55, s55, 0x20016\n    s_lshl_b32 s55, s55, 12\n")
mk8('r_8g', "    s_add_u32 s55, s28, s31\n    s_and_b32 s55, s55, 7\n    s_lshl_b32 s55, s55, 11\n")
mk('r_g', "    s_and_b32 s55, s31, 3\n    s_lshl_b32 s55, s55, 12\n")
def mkx(p,q,g=8):
    if q is None:
        pre=f"    s_bfe_u32 s55, s54, {hex((3<<16)|p)}\n    s_lshl_b32 s55, s55, 11\n"
    else:
        pre=f"    s_lshr_b32 s55, s54, {q-p}\n    s_xor_b32 s55, s55, s54\n    s_bfe_u32 s55, s55, {hex((3<<16)|p)}\n    s_lshl_b32 s55, s55, 11\n"
    n=f"x_{p+11}_{'n' if q is None else q+11}"
    mk8(n,pre); return n
import sys,subprocess
names=[]
for p,q in [(4,None),(5,None),(6,None),(7,None),(8,None),(3,6),(3,7),(3,8),(3,9),(4,7),(4,8),(4,9),(5,8),(6,9)]:
    names.append(mkx(p,q))
print(' '.join(names))
mk8('y1', "    s_and_b32 s55, s28, 4\n    s_or_b32 s55, s55, s48\n    s_lshl_b32 s55, s55, 11\n")
mk8('y3', "    s_lshr_b32 s55, s28, 2\n    s_lshl_b32 s55, s55, 1\n    s_and_b32 s33, s48, 1\n    s_or_b32 s55, s55, s33\n    s_and_b32 s33, s48, 2\n    s_lshl_b32 s33, s33, 1\n    s_or_b32 s55, s55, s33\n    s_lshl_b32 s55, s55, 11\n")
mk('y4', "    s_and_b32 s55, s28, 4\n    s_lshl_b32 s55, s55, 11\n")
mk('y5', "    s_lshr_b32 s55, s48, 1\n    s_xor_b32 s55, s55, s48\n    s_and_b32 s55, s55, 1\n    s_lshl_b32 s55, s55, 1\n    s_and_b32 s33, s28, 4\n    s_or_b32 s55, s55, s33\n    s_lshl_b32 s55, s55, 11\n")
mk('y6', "    s_bfe_u32 s55, s54, 0x10006\n    s_lshl_b32 s55, s55, 1\n    s_and_b32 s33, s28, 4\n    s_or_b32 s55, s55, s33\n    s_lshl_b32 s55, s55, 11\n")
mk8('y7', "    s_xor_b32 s55, s28, s48\n    s_lshl_b32 s55, s55, 11\n")
def mkz(name, nb, rot):
    new = "    s_lshr_b32 s55, s28, 2\n    s_lshl1_add_u32 s40, s48, s55      ; t\n"
    new += "    s_and_b32 s55, s28, 3\n    s_lshl_b32 s55, s55, 3\n    s_lshl_b32 s54, s31, 8\n    s_or_b32 s54, s54, s55\n"
    if nb==2:
        new += "    s_and_b32 s55, s40, 4\n    s_lshl_b32 s55, s55, 5\n    s_or_b32 s54, s54, s55\n"
    if rot:
        new += "    s_or_b32 s54, s54, s40\n"
    new += "    s_lshl_b32 s32, s54, 11\n"
    for i in range(1,8):
        new+=f"    s_xor_b32 s{32+i}, s32, {2048*i}\n"
    m = 7 if nb==3 else 3
    new += f"    s_and_b32 s40, s40, {m}\n    s_lshl_b32 s40, s40, 8\n"
    o2="""    s_lshl_b32 s54, s28, 3
    s_add_u32 s54, s54, s53
    s_lshl_b32 s55, s31, 8
    s_add_u32 s54, s54, s55
"""+old
    assert o2 in src
    s=src.replace(o2,new)
    anchor="    v_lshl_add_u32 v1, v17, 10, v3\n"
    assert anchor in s
    va = f"    v_and_b32 v42, {hex(m<<8)}, v1\n    v_and_b32 v40, 0x300, v2\n    v_lshl_or_b32 v42, v42, 8, v1\n    v_lshl_or_b32 v40, v40, 8, v2\n    v_xor_b32 v42, s40, v42\n    v_xor_b32 v40, s40, v40\n"
    va += f"    v_xor_b32 v41, {hex(0x40400 if nb==3 else 0x400)}, v40\n"
    s=s.replace(anchor,anchor+va)
    def fix(mm):
        isk = mm.group(2)=='1'
        r=int(mm.group(4)); off=int(mm.group(5))
        if off>=2048: r+=1; off-=2048
        if isk: v='v42'
        else:
            v='v41' if off==1024 else 'v40'; off=0
        return f"{mm.group(1)}{v}, {mm.group(3)}, s{r} offen offset:{off} nt"
    s2,n=re.subn(r"(buffer_load_dwordx4 v\[\d+:\d+\], )v([12]), (s\[(?:8:11|12:15)\]), s(\d+) offen offset:(\d+) nt", fix, s)
    assert n==32
    open(f'var5/{name}.s','w').write(s2)
mkz('z1',3,0); mkz('z1r',3,1); mkz('z2',2,0); mkz('z2r',2,1)
def mkw(name, mode):
    new="    s_lshl_b32 s32, s54, 11\n"
    if mode=='t': new+="    s_add_u32 s33, s32, 8192\n"
    if mode=='g': new+="    s_and_b32 s55, s28, 4\n    s_lshl_b32 s55, s55, 11\n    s_or_b32 s32, s32, s55\n    s_xor_b32 s33, s32, 8192\n"
    s=src.replace(old,new)
    anchor="    v_lshl_add_u32 v1, v17, 10, v3\n"
    if mode=='t':
        va="    v_and_b32 v42, 0x700, v1\n    v_and_b32 v40, 0x300, v2\n    v_mul_u32_u24 v42, 7, v42\n    v_mul_u32_u24 v40, 7, v40\n    v_add_u32 v42, v42, v1\n    v_add_u32 v40, v40, v2\n"
    else:
        k = 15 if mode=='h' else 7
        va=f"    v_and_b32 v42, 0x300, v1\n    v_and_b32 v40, 0x300, v2\n    v_mul_u32_u24 v42, {k}, v42\n    v_mul_u32_u24 v40, {k}, v40\n    v_add_u32 v42, v42, v1\n    v_add_u32 v40, v40, v2\n"
    s=s.replace(anchor,anchor+va)
    def fix(mm):
        isk = mm.group(2)=='1'
        r=int(mm.group(4)); off=int(mm.group(5))
        j=(r-32) + (1 if off>=2048 else 0); off%=2048
        if mode=='t':
            if isk: v,so,o='v42',32,j*256+off
            else: v,so,o='v40',(33 if off else 32),j*256
        elif mode=='h':
            v='v42' if isk else 'v40'; so=32; o=(j&3)*256+(j>>2)*2048+off
        else:
            v='v42' if isk else 'v40'; so=32+(j>>2); o=(j&3)*256+off
        assert o<4096
        return f"{mm.group(1)}{v}, {mm.group(3)}, s{so} offen offset:{o} nt"
    s2,n=re.subn(r"(buffer_load_dwordx4 v\[\d+:\d+\], )v([12]), (s\[(?:8:11|12:15)\]), s(\d+) offen offset:(\d+) nt", fix, s)
    assert n==32
    open(f'var5/{name}.s','w').write(s2)
mkw('w_t','t'); mkw('w_h','h'); mkw('w_g','g')
new="""    s_bfe_u32 s55, s54, 0x30005       ; wave half and split pick the first 2 KB piece
    s_or_b32 s54, s54, s55
    s_lshl_b32 s32, s54, 11          ; byte offset in k / v
"""+"".join(f"    s_xor_b32 s{32+i}, s32, {2048*i}\n" for i in range(1,8))
s=open('var5/x_16_n.s').read()
i0=s.index("    s_lshl_b32 s32, s54, 11"); i1=s.index("    s_lshl_b32 s44, s31, 10")
open('var5/x16t.s','w').write(s[:i0]+new+s[i1:])
print(' '.join(mkx(p,q) for p,q in [(5,9),(5,10),(5,11),(6,10),(6,11),(3,5),(4,6),(4,5),(5,6),(5,7)]))
```
